```python
import torch

def _softmax(x, axis=-1):
    return torch.softmax(x, dim=axis)

def _gelu(x):
    return torch.nn.functional.gelu(x, approximate='tanh')

def _silu(x):
    return torch.nn.functional.silu(x)

def _sigmoid(x):
    return torch.sigmoid(x)

def _layernorm(x, axis=-1, eps=1e-05):
    m = x.mean(dim=axis, keepdim=True)
    v = x.var(dim=axis, keepdim=True, unbiased=False)
    return (x - m) / torch.sqrt(v + eps)

def _scatter_add(tgt, idx, src, axis=0):
    return tgt.clone().index_add_(axis, idx, src)

def _segment_sum(src, seg, n):
    out = torch.zeros((n,) + src.shape[1:], dtype=src.dtype)
    return out.index_add_(0, seg, src)

def _pad(x, pw):
    flat = tuple((v for pair in reversed(pw) for v in pair))
    return torch.nn.functional.pad(x, flat)
kernel_name = 'adaLN_cond__gqa_block_cached__mixer_s_mlp__prompt'

def setup_inputs():

    _w = lambda a: (lambda t: t.to(torch.bfloat16) if t.is_floating_point() else t)(torch.as_tensor(a))

    def _A_setup():
        B, Sq, D = (1, 2048, 512)
        Hq, Hkv, Sk, Dh = (32, 8, 2048, 128)
        assert Hq % Hkv == 0, (Hq, Hkv)
        return {'x': _w((lambda *s: torch.randn(*s, dtype=torch.bfloat16) * 0.1)(B, Sq, D)), 'k_cache': _w((lambda *s: torch.randn(*s, dtype=torch.bfloat16) * 0.8)(B, Hkv, Sk, Dh)), 'v_cache': _w((lambda *s: torch.randn(*s, dtype=torch.bfloat16) * 0.8)(B, Hkv, Sk, Dh)), 'wq': _w((lambda *s: torch.randn(*s, dtype=torch.bfloat16) * 0.8)(D, Hq * Dh) * D ** (-0.5)), 'wo': _w((lambda *s: torch.randn(*s, dtype=torch.bfloat16) * 0.8)(Hq * Dh, D) * (Hq * Dh) ** (-0.5))}
    _A_in = _A_setup()

    def _B_setup():
        B, S, D, F = (1, 2048, 512, 1792)
        return {'x': _w((lambda *s: torch.randn(*s, dtype=torch.bfloat16) * 0.1)(B, S, D)), 'w1': _w((lambda *s: torch.randn(*s, dtype=torch.bfloat16) * 3.2)(D, D) * D ** (-0.5)), 'w2': _w((lambda *s: torch.randn(*s, dtype=torch.bfloat16) * 3.2)(D, D) * D ** (-0.5)), 'w3': _w((lambda *s: torch.randn(*s, dtype=torch.bfloat16) * 3.2)(D, F) * D ** (-0.5)), 'w4': _w((lambda *s: torch.randn(*s, dtype=torch.bfloat16) * 3.2)(F, D) * F ** (-0.5))}
    _B_in = _B_setup()
    return {'A_x': _A_in['x'], 'A_k_cache': _A_in['k_cache'], 'A_v_cache': _A_in['v_cache'], 'A_wq': _A_in['wq'], 'A_wo': _A_in['wo'], 'B_x': _B_in['x'], 'B_w1': _B_in['w1'], 'B_w2': _B_in['w2'], 'B_w3': _B_in['w3'], 'B_w4': _B_in['w4'], 'c': _w((lambda *s: torch.randn(*s, dtype=torch.bfloat16) * 0.2)(1, 512) * 8.0), 'w_mod': _w((lambda *s: torch.randn(*s, dtype=torch.bfloat16) * 0.2)(512, 6 * 512) * 512 ** (-0.5) * 8.0)}

def reference(A_x, A_k_cache, A_v_cache, A_wq, A_wo, B_x, B_w1, B_w2, B_w3, B_w4, c, w_mod):

    def _A_ref(x, k_cache, v_cache, wq, wo):
        B, Sq, D = x.shape
        Hq, Dh = (32, 128)
        Hkv = k_cache.shape[1]
        rep = Hq // Hkv
        q = (lambda x, *d: x.permute(*d))((x @ wq).reshape(B, Sq, Hq, Dh), 0, 2, 1, 3)
        k = (lambda x, n, axis: torch.repeat_interleave(x, n, dim=axis))(k_cache, rep, axis=1)
        v = (lambda x, n, axis: torch.repeat_interleave(x, n, dim=axis))(v_cache, rep, axis=1)
        scores = torch.einsum('bhqd,bhkd->bhqk', q, k) * Dh ** (-0.5)
        p = _softmax(scores, axis=-1)
        o = torch.einsum('bhqk,bhkd->bhqd', p, v)
        return (lambda x, *d: x.permute(*d))(o, 0, 2, 1, 3).reshape(B, Sq, Hq * Dh) @ wo

    def _B_ref(x, w1, w2, w3, w4):
        B, S, D = x.shape
        h = _gelu(_layernorm(x, axis=-1) @ w1)
        c = D // 4
        g0 = _pad(h[:, :, 0 * c:1 * c], ((0, 0), (1, 0), (0, 0)))[:, :S, :]
        g1 = _pad(h[:, :, 1 * c:2 * c], ((0, 0), (0, 1), (0, 0)))[:, 1:, :]
        g2 = _pad(h[:, :, 2 * c:3 * c], ((0, 0), (2, 0), (0, 0)))[:, :S, :]
        g3 = _pad(h[:, :, 3 * c:], ((0, 0), (0, 2), (0, 0)))[:, 2:, :]
        hs = torch.concatenate([g0, g1, g2, g3], axis=-1) @ w2
        x1 = x + hs
        h2 = _gelu(_layernorm(x1, axis=-1) @ w3) @ w4
        return x1 + h2
    x = A_x
    mod = (_silu(c) @ w_mod).reshape(c.shape[0], 6, 1, -1)
    sa, ca, ga, sb, cb, gb = (mod[:, 0].clone(), mod[:, 1].clone(), mod[:, 2].clone(), mod[:, 3].clone(), mod[:, 4].clone(), mod[:, 5].clone())
    h = _layernorm(x, axis=-1) * (1 + ca) + sa
    x = x + ga * _A_ref(h, A_k_cache, A_v_cache, A_wq, A_wo)
    h = _layernorm(x, axis=-1) * (1 + cb) + sb
    x = x + gb * _B_ref(h, B_w1, B_w2, B_w3, B_w4)
    return x
```

```python
import re

_REG = re.compile(r'\b([vas])(?:(\d+)|\[(\d+):(\d+)\])')
TRANS = ('v_exp_f32', 'v_log_f32', 'v_rcp_f32', 'v_rsq_f32', 'v_sqrt_f32', 'v_sin_f32', 'v_cos_f32')


def regs_of(op):
    out = set()
    op = op.strip()
    if op.startswith('vcc'):
        return {('s', 'vcc')}
    if op.startswith('exec'):
        return {('s', 'exec')}
    if op == 'm0':
        return {('s', 'm0')}
    for m in _REG.finditer(op):
        k = m.group(1)
        if m.group(2) is not None:
            out.add((k, int(m.group(2))))
        else:
            for i in range(int(m.group(3)), int(m.group(4)) + 1):
                out.add((k, i))
    return out


def split_ops(s):
    ops, depth, cur = [], 0, ''
    for ch in s:
        if ch == '[':
            depth += 1
        if ch == ']':
            depth -= 1
        if ch == ',' and depth == 0:
            ops.append(cur.strip())
            cur = ''
        else:
            cur += ch
    if cur.strip():
        ops.append(cur.strip())
    return ops


class Ins:
    def __init__(self, text):
        self.text = text
        t = text.split(';')[0].strip()
        parts = t.split(None, 1)
        self.op = parts[0]
        ops = split_ops(parts[1]) if len(parts) > 1 else []
        self.mods = ''
        if ops:
            last = ops[-1].split(None, 1)
            if len(last) > 1:
                ops[-1] = last[0]
                self.mods = last[1]
        self.ops = ops
        op = self.op
        self.kind = 'other'
        self.dst, self.src = set(), set()
        self.srcC = set()
        self.srcAB = set()
        self.passes = 0
        self.states = 1
        R = [regs_of(o) for o in ops]
        if op == 's_nop':
            self.states = int(ops[0]) + 1
        elif op.startswith('v_mfma'):
            self.kind = 'mfma'
            self.dst = R[0]
            self.srcAB = R[1] | R[2]
            self.srcC = R[3]
            self.src = self.srcAB | self.srcC
            self.passes = 8 if '32x32' in op else 4
        elif op.startswith('v_'):
            self.kind = 'valu'
            if op.startswith('v_cmp'):
                self.dst = R[0]
                self.src = set().union(*R[1:])
                if op.startswith('v_cmpx'):
                    self.dst |= {('s', 'exec')}
            elif 'swap' in op:
                self.dst = R[0] | R[1]
                self.src = R[0] | R[1]
            elif op.startswith(('v_add_co', 'v_sub_co', 'v_addc_co')):
                self.dst = R[0] | R[1]
                self.src = set().union(*R[2:])
            elif op == 'v_nop':
                pass
            else:
                self.dst = R[0]
                self.src = set().union(*R[1:]) if len(R) > 1 else set()
                if op.startswith(('v_fmac', 'v_mac', 'v_dot2c', 'v_writelane')) or '_dpp' in op:
                    self.src |= R[0]
                if op.startswith('v_cndmask') and len(ops) == 3:
                    self.src |= {('s', 'vcc')}
        elif op.startswith('ds_'):
            self.kind = 'ds'
            if op.startswith(('ds_read', 'ds_bpermute', 'ds_permute', 'ds_swizzle')):
                self.dst = R[0]
                self.src = set().union(*R[1:])
            else:
                self.src = set().union(*R)
        elif op.startswith(('buffer_', 'global_')):
            self.kind = 'vmem'
            toks = self.mods.split()
            self.lds = 'lds' in toks
            if 'load' in op and not self.lds:
                self.dst = R[0]
                self.src = set().union(*R[1:])
            elif 'atomic' in op and 'sc0' in toks:
                self.dst = R[0]
                self.src = set().union(*R)
            else:
                self.src = set().union(*R) if R else set()
            self.wide_store = 'store' in op and ('x4' in op or 'x3' in op)
            if self.wide_store:
                self.sdata = R[0] if op.startswith('buffer_') else R[1]
        elif op.startswith('s_'):
            self.kind = 'salu'
            if R and not op.startswith(('s_cmp', 's_cbranch', 's_branch', 's_waitcnt', 's_barrier', 's_setprio', 's_sleep', 's_endpgm')):
                self.dst = R[0]
                self.src = set().union(*R[1:]) if len(R) > 1 else set()
        self.is_trans = op.replace('_e32', '').replace('_e64', '') in TRANS
        self.is_dpp = '_dpp' in op or 'row_' in self.mods or 'quad_perm' in self.mods
        self.is_perm = op.startswith('v_permlane')
        self.is_rl = op.startswith(('v_readlane', 'v_readfirstlane'))
        self.is_dot = op.startswith('v_dot')


def vec(s):
    return {r for r in s if r[0] in 'va'}


def sca(s):
    return {r for r in s if r[0] == 's'}


def need(p, c):
    n = 0
    if p.kind == 'valu':
        pv = vec(p.dst)
        ps = sca(p.dst)
        if c.kind == 'mfma' and pv & c.src:
            n = max(n, 2)
        if c.kind == 'mfma' and ('s', 'exec') in ps:
            n = max(n, 4)
        if c.kind == 'valu':
            if (c.is_dpp or c.is_perm) and pv & c.src:
                n = max(n, 2)
            if c.is_rl and pv & c.src:
                n = max(n, 1)
            if p.is_trans and not c.is_trans and pv & c.src:
                n = max(n, 1)
            if ps & c.src:
                n = max(n, 4 if c.is_rl else 2)
            if ('s', 'exec') in ps and (c.is_dpp or c.is_rl or c.is_perm):
                n = max(n, 5)
            if p.is_dot and (pv & (c.src | c.dst)) and not (c.op == p.op and not (pv & (c.src - c.dst))):
                n = max(n, 3)
        elif p.is_dot and c.kind in ('ds', 'vmem', 'mfma') and pv & c.src:
            n = max(n, 3)
        if c.kind == 'vmem' and ps & c.src:
            n = max(n, 5)
    elif p.kind == 'mfma':
        big = 12 if p.passes == 8 else 8
        if c.kind == 'mfma':
            if p.dst & c.srcAB:
                n = max(n, big)
            if p.dst & c.srcC:
                if not (p.dst == c.srcC and p.passes == c.passes):
                    n = max(n, big - 2)
            elif p.dst & c.dst:
                n = max(n, big - 2)
        elif c.kind in ('valu', 'ds', 'vmem'):
            if p.dst & (c.src | c.dst):
                n = max(n, big)
            if c.kind == 'valu' and vec(p.srcC) & c.dst:
                n = max(n, 7 if p.passes == 8 else 3)
    elif p.kind == 'salu':
        if ('s', 'm0') in p.dst and c.kind == 'vmem' and c.lds:
            n = max(n, 1)
    elif p.kind == 'vmem':
        if p.wide_store and p.sdata & c.dst:
            n = max(n, 2)
    return n


def fix_hazards(lines, report=None):
    out, hist = [], []
    for ln in lines:
        s = ln.strip()
        if not s or s.startswith((';', '.', '//')) or s.endswith(':'):
            out.append(ln)
            continue
        c = Ins(s)
        dist, req = 0, 0
        for p in reversed(hist):
            if dist > 20:
                break
            req = max(req, need(p, c) - dist)
            dist += p.states
        while req > 0:
            k = min(req, 16)
            nop = Ins('s_nop %d' % (k - 1))
            out.append('    s_nop %d' % (k - 1))
            hist.append(nop)
            if report is not None:
                report.append((len(out), k, s))
            req -= k
        out.append(ln)
        hist.append(c)
        hist = hist[-24:]
    return out


class Kernel:
    def __init__(self, name, grid, block=256, lds=0, vgpr=256, agpr=0, sgpr=102):
        self.name, self.grid, self.block, self.lds = name, grid, block, lds
        self.vgpr, self.agpr, self.sgpr = vgpr, agpr, sgpr
        self.lines = []

    def __call__(self, s):
        for ln in s.strip('\n').split('\n'):
            ln = ln.strip()
            if ln:
                self.lines.append(ln if ln.endswith(':') or ln.startswith('.') else '    ' + ln)

    def emit(self, seq):
        for s in seq:
            self(s)

    def label(self, l):
        self.lines.append(l + ':')

    def interleave(self, mfmas, gaps):
        for i, m in enumerate(mfmas):
            if m is not None:
                self(m)
            for f in gaps[i]:
                self(f)

    def text(self, verbose=False):
        rep = []
        body = fix_hazards(self.lines, rep)
        if verbose:
            print('[%s] %d lines, %d hazard nops' % (self.name, len(body), len(rep)))
            for r in rep:
                print('    nop', r)
        acc = (self.vgpr + 3) // 4 * 4
        total = acc + self.agpr if self.agpr else self.vgpr
        head = ['.text', '.globl %s' % self.name, '.p2align 8', '.type %s,@function' % self.name, self.name + ':']
        desc = ['.section .rodata,"a"', '.p2align 6', '.amdhsa_kernel %s' % self.name,
                '  .amdhsa_next_free_vgpr %d' % total,
                '  .amdhsa_next_free_sgpr %d' % self.sgpr,
                '  .amdhsa_accum_offset %d' % acc,
                '  .amdhsa_group_segment_fixed_size 0',
                '  .amdhsa_kernarg_size 120',
                '  .amdhsa_user_sgpr_count 2',
                '  .amdhsa_user_sgpr_kernarg_segment_ptr 1',
                '  .amdhsa_system_sgpr_workgroup_id_x 1',
                '.end_amdhsa_kernel']
        return '\n'.join(head + body + desc) + '\n'


def check_wrap(lines_tail, lines_head):
    rep = []
    fixed_tail = fix_hazards(lines_tail)
    fix_hazards(fixed_tail[-30:] + lines_head[:30], rep)
    return rep


def build(kernels, header, verbose=False):
    top = header.rstrip('\n').split('\n')
    for k in kernels:
        top.append('; @launch kernel=%s grid=(%d,1,1) block=(%d,1,1) lds=%d' % (k.name, k.grid, k.block, k.lds))
    s = '\n'.join(top) + '\n.amdgcn_target "amdgcn-amd-amdhsa--gfx950"\n'
    done = set()
    for k in kernels:
        if k.name not in done:
            s += k.text(verbose)
            done.add(k.name)
    return s
```

```python
import math
from asmlib import Kernel
from gen import (A_X, B_W1, B_W2, B_W3, B_W4, D_OUT, D_WS, KB, MB, LOG2E, WS_SIZE, WS_MOD, WS_CS3, WS_STAT, WS_U,
                 WS_X, WS_HB, WS_H, WS_X1, WS_H2, WS_PART, Prof, ar, f32, srd, vr)

M16 = 'v_mfma_f32_16x16x32_bf16'
GC1 = -2.0 * LOG2E * math.sqrt(2.0 / math.pi)
GC2 = GC1 * 0.044715


class Cnt:
    def __init__(self, cap):
        self.q, self.cap = [], cap

    def issue(self, tag):
        self.q.append(tag)
        assert len(self.q) <= self.cap, (tag, len(self.q))

    def wait(self, tag):
        idx = max(i for i, t in enumerate(self.q) if t == tag)
        self.q = self.q[idx + 1:]
        return len(self.q)


def xsum(k, regs, tmp, bits):
    for b in bits:
        if b == 3:
            for r in regs:
                k('v_add_f32_dpp v%d, v%d, v%d row_ror:8 row_mask:0xf bank_mask:0xf' % (r, r, r))
        else:
            for i, r in enumerate(regs):
                k('v_mov_b32 v%d, v%d' % (tmp + i, r))
            for i, r in enumerate(regs):
                k('v_permlane%d_swap_b32 v%d, v%d' % (16 if b == 4 else 32, r, tmp + i))
            for i, r in enumerate(regs):
                k('v_add_f32 v%d, v%d, v%d' % (r, r, tmp + i))


def unpack(k, dst, src, n):
    for j in range(n):
        k('v_lshlrev_b32 v%d, 16, v%d' % (dst + 2 * j, src + j))
        k('v_and_b32 v%d, 0xffff0000, v%d' % (dst + 2 * j + 1, src + j))


def tree(k, op, dst, regs):
    k('%s v%d, v%d, v%d' % (op, dst, regs[0], regs[1]))
    k('%s v%d, v%d, v%d' % (op, dst + 1, regs[2], regs[3]))
    for i in range(4, len(regs)):
        k('%s v%d, v%d, v%d' % (op, dst + (i & 1), dst + (i & 1), regs[i]))
    k('%s v%d, v%d, v%d' % (op, dst, dst, dst + 1))


def kr():
    k = Kernel('red_kernel', 256, 512, lds=8 * KB, vgpr=84, sgpr=48)
    k('s_cmp_ge_u32 s2, 256')
    k('s_cbranch_scc1 KR_END')
    pf = Prof(k, [0, 9, 130, 255])
    pf.stamp()
    k('s_load_dwordx2 s[4:5], s[0:1], %d' % D_WS)
    k('s_load_dwordx2 s[6:7], s[0:1], %d' % A_X)
    PA, AX, GA, CB, SB_, AC, T = 8, 40, 44, 52, 60, 68, 76
    k('v_and_b32 v1, 7, v0')
    k('v_lshrrev_b32 v2, 3, v0')
    k('v_lshlrev_b32 v3, 4, v1')
    k('v_lshl_add_u32 v3, v2, 9, v3')
    k('v_lshlrev_b32 v4, 4, v2')
    k('v_lshl_add_u32 v4, v1, 10, v4')
    k('v_lshlrev_b32 v5, 5, v2')
    k('v_lshlrev_b32 v6, 3, v0')
    k('v_and_b32 v7, 63, v0')
    k('v_lshrrev_b32 v2, 3, v7')
    k('v_lshlrev_b32 v7, 3, v7')
    k('v_lshl_add_u32 v7, v2, 9, v7')
    k('s_lshr_b32 s16, s2, 2')
    k('s_lshl_b32 s16, s16, 15')
    k('s_and_b32 s17, s2, 3')
    k('s_lshl_b32 s17, s17, 7')
    k('s_add_u32 s16, s16, s17')
    k('s_add_u32 s17, s16, %d' % WS_PART)
    k('s_lshl_b32 s18, s2, 13')
    k('s_mov_b32 s20, %d' % (WS_MOD + 4096))
    k('s_mov_b32 s21, %d' % (WS_MOD + 8192))
    k('s_waitcnt lgkmcnt(0)')
    srd(k, 8, 4, WS_SIZE)
    srd(k, 12, 6, 2 * MB)
    vm = Cnt(63)
    for g in range(8):
        k('buffer_load_dwordx4 %s, v3, s[8:11], s17 offen' % vr(PA + 4 * g, 4))
        vm.issue('p%d' % g)
        if g < 7:
            k('s_add_u32 s17, s17, %d' % (2 * MB))
    k('buffer_load_dwordx4 %s, v4, s[12:15], s18 offen' % vr(AX, 4))
    vm.issue('ax')
    for reg, so, off in ((GA, 20, 0), (CB, 21, 0), (SB_, 20, 2048)):
        for h in range(2):
            k('buffer_load_dwordx4 %s, v5, s[8:11], s%d offen offset:%d' % (vr(reg + 4 * h, 4), so, off + 16 * h))
            vm.issue('m%d' % reg)
    for g in range(8):
        k('s_waitcnt vmcnt(%d)' % vm.wait('p%d' % g))
        if g == 0:
            unpack(k, AC, PA, 4)
        else:
            unpack(k, T, PA + 4 * g, 4)
            for j in range(4):
                k('v_pk_add_f32 %s, %s, %s' % (vr(AC + 2 * j, 2), vr(AC + 2 * j, 2), vr(T + 2 * j, 2)))
    pf.stamp()
    k('s_waitcnt vmcnt(%d)' % vm.wait('m%d' % GA))
    unpack(k, T, AX, 4)
    for j in range(4):
        k('v_pk_fma_f32 %s, %s, %s, %s' % (vr(AC + 2 * j, 2), vr(AC + 2 * j, 2), vr(GA + 2 * j, 2), vr(T + 2 * j, 2)))

    def round_store(off, pk):
        for j in range(4):
            k('v_cvt_pk_bf16_f32 v%d, v%d, v%d' % (pk + j, AC + 2 * j, AC + 2 * j + 1))
        k('s_add_u32 s19, s16, %d' % off)
        k('buffer_store_dwordx4 %s, v3, s[8:11], s19 offen' % vr(pk, 4))
        vm.issue('st')

    def ln(lds):
        m, q, t = 24, 25, 28
        tree(k, 'v_add_f32', m, list(range(AC, AC + 8)))
        xsum(k, [m], t, (3, 4, 5))
        k('v_mul_f32 v%d, %s, v%d' % (m, f32(1.0 / 64), m))
        for j in range(8):
            k('v_sub_f32 v%d, v%d, v%d' % (AC + j, AC + j, m))
        k('v_mul_f32 v%d, v%d, v%d' % (q, AC, AC))
        k('v_mul_f32 v%d, v%d, v%d' % (t, AC + 1, AC + 1))
        for j in range(2, 8):
            k('v_fmac_f32 v%d, v%d, v%d' % (t if j & 1 else q, AC + j, AC + j))
        k('v_add_f32 v%d, v%d, v%d' % (q, q, t))
        xsum(k, [q], t, (3, 4, 5))
        k('ds_write_b64 v6, %s offset:%d' % (vr(m, 2), lds))
        k('s_waitcnt lgkmcnt(0)')
        k('s_barrier')
        k('ds_read_b64 v[26:27], v7 offset:%d' % lds)
        k('s_waitcnt lgkmcnt(0)')
        k('v_mul_f32 v30, %s, v26' % f32(0.125))
        xsum(k, [30], t, (3, 4, 5))
        k('v_sub_f32 v26, v26, v30')
        k('v_mul_f32 v26, v26, v26')
        k('v_fmac_f32 v27, %s, v26' % f32(64.0))
        xsum(k, [27], t, (3, 4, 5))
        k('v_sub_f32 v30, v%d, v30' % m)
        k('v_mov_b32 v32, %s' % f32(1e-5))
        k('v_fmac_f32 v32, %s, v27' % f32(1.0 / 512))
        k('v_rsq_f32 v32, v32')
        for j in range(4):
            k('v_pk_add_f32 %s, %s, v[30:31] op_sel_hi:[1,0]' % (vr(AC + 2 * j, 2), vr(AC + 2 * j, 2)))
        for j in range(4):
            k('v_pk_mul_f32 %s, %s, v[32:33] op_sel_hi:[1,0]' % (vr(AC + 2 * j, 2), vr(AC + 2 * j, 2)))

    round_store(WS_X, 8)
    unpack(k, AC, 8, 4)
    ln(0)
    k('s_waitcnt vmcnt(%d)' % vm.wait('m%d' % SB_))
    for j in range(4):
        k('v_pk_fma_f32 %s, %s, %s, %s' % (vr(AC + 2 * j, 2), vr(AC + 2 * j, 2), vr(CB + 2 * j, 2), vr(SB_ + 2 * j, 2)))
    round_store(WS_HB, 12)
    unpack(k, AC, 12, 4)
    ln(4096)
    round_store(WS_U, 16)
    pf.finish('KR')
    k.label('KR_END')
    k('s_endpgm')
    return k


S_W, S_A, S_K, S_M, S_CT, S_R0 = 5, 24, 25, 26, 27, 28
VQ, VM_, VB, DA, RA = 2, 3, 4, 8, 16
FA = 32


def gelu(k, regs, tmp, k1, k2, sc):
    n = len(regs)
    bc = 'op_sel_hi:[1,0,0]'
    for i, r in enumerate(regs):
        k('v_pk_mul_f32 %s, %s, %s' % (vr(tmp + 2 * i, 2), vr(r, 2), vr(r, 2)))
    for i, r in enumerate(regs):
        k('v_pk_fma_f32 %s, %s, %s, %s %s' % (vr(tmp + 2 * i, 2), vr(tmp + 2 * i, 2), vr(k2, 2), vr(k1, 2), bc))
    for i, r in enumerate(regs):
        k('v_pk_mul_f32 %s, %s, %s' % (vr(tmp + 2 * i, 2), vr(tmp + 2 * i, 2), vr(r, 2)))
    for i in range(2 * n):
        k('v_exp_f32 v%d, v%d' % (tmp + i, tmp + i))
    for i in range(n):
        k('v_pk_fma_f32 %s, %s, %s, %s %s' % (vr(tmp + 2 * i, 2), vr(tmp + 2 * i, 2), vr(sc, 2), vr(sc, 2), bc))
    for i in range(2 * n):
        k('v_rcp_f32 v%d, v%d' % (tmp + i, tmp + i))
    for i, r in enumerate(regs):
        k('v_pk_mul_f32 %s, %s, %s' % (vr(r, 2), vr(r, 2), vr(tmp + 2 * i, 2)))


class Gemm:
    def __init__(self, name, tag, RB, NB, nst, wptr, wstride, wrows, bbase, bk, shifts=None, slots=None, ahead=None, vgpr=128):
        self.RB, self.NB, self.nst, self.tag = RB, NB, nst, tag
        self.wstride, self.bk, self.shifts = wstride, bk, shifts
        self.sb = 128 * NB * 32
        self.slots = slots or nst
        self.ahead = ahead or nst
        self.depth = 2 if RB == 1 else 1
        self.ACC = FA + self.depth * NB * 4
        self.FREE = self.ACC + RB * NB * 4
        k = self.k = Kernel(name, 256, 256, lds=self.slots * self.sb, vgpr=vgpr, agpr=nst * 16 * RB, sgpr=48)
        self.vm = Cnt(63)
        k('s_cmp_ge_u32 s2, 256')
        k('s_cbranch_scc1 %s_END' % tag)
        self.pf = Prof(k, [0, 9, 130, 255])
        self.pf.stamp()
        k('s_load_dwordx2 s[30:31], s[0:1], %d' % D_WS)
        k('s_load_dwordx2 s[32:33], s[0:1], %d' % wptr)
        k('s_load_dwordx2 s[34:35], s[0:1], %d' % D_OUT)
        k('v_lshrrev_b32 v1, 6, v0')
        k('v_readfirstlane_b32 s%d, v1' % S_W)
        k('v_and_b32 v1, 63, v0')
        k('v_lshrrev_b32 v%d, 4, v1' % VQ)
        k('v_and_b32 v%d, 15, v1' % VM_)
        k('s_and_b32 s3, s2, 7')
        k('s_lshr_b32 s4, s2, 3')
        if RB == 1:
            k('s_lshl_b32 s3, s3, 2')
            k('s_and_b32 s6, s4, 3')
            k('s_add_u32 s3, s3, s6')
            k('s_lshr_b32 s%d, s4, 2' % S_CT)
            k('s_lshl_b32 s3, s3, 6')
            k('s_lshl_b32 s6, s%d, 4' % S_W)
        else:
            k('s_lshr_b32 s6, s3, 2')
            k('s_lshl_b32 s6, s6, 3')
            k('s_lshr_b32 s%d, s4, 2' % S_CT)
            k('s_add_u32 s%d, s%d, s6' % (S_CT, S_CT))
            k('s_and_b32 s3, s3, 3')
            k('s_lshl_b32 s3, s3, 2')
            k('s_and_b32 s6, s4, 3')
            k('s_add_u32 s3, s3, s6')
            k('s_lshl_b32 s3, s3, 7')
            k('s_lshl_b32 s6, s%d, 5' % S_W)
        k('s_add_u32 s%d, s3, s6' % S_R0)
        k('s_mov_b32 s7, %d' % (bk * 64))
        for i, sh in enumerate(shifts or [0]):
            k('s_add_u32 s6, s%d, %d' % (S_R0, sh & 0xffffffff))
            k('v_add_u32 v28, s6, v%d' % VM_)
            k('v_lshrrev_b32 v29, 5, v28')
            k('v_mul_lo_u32 v29, v29, s7')
            k('v_and_b32 v30, 31, v28')
            k('v_lshl_add_u32 v29, v30, 4, v29')
            k('v_lshl_add_u32 v%d, v%d, 9, v29' % (VB + i, VQ))
            if shifts:
                k('v_mov_b32 v30, 2.0')
                k('v_cmp_gt_u32 vcc, 0x800, v28')
                k('v_cndmask_b32 v%d, v30, v%d, vcc' % (VB + i, VB + i))
        k('s_mov_b32 s7, %d' % wstride)
        k('v_bfe_u32 v28, v1, 2, 2')
        k('v_and_b32 v29, 3, v1')
        if NB == 4:
            k('v_lshrrev_b32 v30, 3, v1')
            k('v_mul_lo_u32 v31, v30, s7')
            k('v_and_b32 v30, 2, v30')
            k('v_and_b32 v27, 7, v1')
            k('v_xor_b32 v30, v30, v27')
            k('v_lshl_add_u32 v%d, v30, 4, v31' % DA)
            for j in range(1, 4):
                k('v_xor_b32 v%d, %d, v%d' % (DA + j, (j & 1) * 64, DA))
                k('v_add_u32 v%d, %d, v%d' % (DA + j, j * (8 * wstride - KB), DA + j))
            k('v_lshlrev_b32 v30, 10, v%d' % VQ)
            k('v_lshl_add_u32 v30, v28, 7, v30')
            k('v_lshl_add_u32 v30, v29, 3, v30')
            k('v_lshrrev_b32 v31, 1, v28')
            k('v_lshl_add_u32 v30, v31, 5, v30')
            k('v_and_b32 v31, 1, v%d' % VQ)
            k('v_lshl_add_u32 v%d, v31, 6, v30' % RA)
            for nb in range(1, 4):
                k('v_xor_b32 v%d, %d, v%d' % (RA + nb, nb << 5, RA))
            for hb in range(1, (self.slots * self.sb + 65535) // 65536):
                for nb in range(4):
                    k('v_add_u32 v%d, %d, v%d' % (RA + 4 * hb + nb, hb * 64 * KB, RA + nb))
        else:
            for j in range(7):
                k('v_add_u32 v30, %d, v1' % (64 * j))
                k('v_mul_u32_u24 v31, 4682, v30')
                k('v_lshrrev_b32 v31, 16, v31')
                k('v_mul_u32_u24 v27, 14, v31')
                k('v_sub_u32 v30, v30, v27')
                k('v_and_b32 v27, 0x13, v31')
                k('v_bfe_u32 v26, v31, 2, 1')
                k('v_lshl_add_u32 v27, v26, 3, v27')
                k('v_bfe_u32 v26, v31, 3, 1')
                k('v_lshl_add_u32 v27, v26, 2, v27')
                k('v_mul_lo_u32 v27, v27, s7')
                k('v_lshl_add_u32 v%d, v30, 4, v27' % (DA + j))
                if j & 3:
                    k('v_subrev_u32 v%d, %d, v%d' % (DA + j, (j & 3) * KB, DA + j))
            k('v_lshrrev_b32 v30, 1, v%d' % VQ)
            k('v_lshl_add_u32 v30, v30, 4, v28')
            k('v_and_b32 v31, 1, v%d' % VQ)
            k('v_lshl_add_u32 v30, v31, 2, v30')
            k('v_mul_u32_u24 v30, 224, v30')
            k('v_lshl_add_u32 v%d, v29, 3, v30' % RA)
            k('v_add_u32 v%d, %d, v%d' % (RA + 1, 2 * self.sb, RA))
        k('s_mul_i32 s%d, s%d, %d' % (S_A, S_W, 32 * wstride))
        k('s_mul_i32 s6, s%d, %d' % (S_CT, NB * 32))
        k('s_add_u32 s%d, s%d, s6' % (S_A, S_A))
        k('s_mul_i32 s%d, s%d, %d' % (S_M, S_W, self.sb // 4))
        k('s_mov_b32 s%d, 0' % S_K)
        k('s_waitcnt lgkmcnt(0)')
        srd(k, 12, 32, wrows * wstride)
        srd(k, 8, 30, WS_SIZE)
        k('s_add_u32 s30, s30, %d' % bbase)
        k('s_addc_u32 s31, s31, 0')
        srd(k, 16, 30, 2048 * bk * 2)
        srd(k, 20, 34, 2 * MB)

    def load(self, text, tag):
        self.k(text)
        self.vm.issue(tag)

    def stage_loads(self, s):
        k, RB, NB = self.k, self.RB, self.NB
        nd = NB
        slot = (s % self.slots) * self.sb
        for j in range(nd):
            if j % 4 == 0:
                k('s_add_u32 m0, s%d, %d' % (S_M, slot + j * KB))
            self.load('buffer_load_dwordx4 v%d, s[12:15], s%d offen offset:%d lds' % (DA + j, S_A, (j & 3) * KB), s)
        k('s_add_u32 s%d, s%d, %d' % (S_A, S_A, 128 * self.wstride))
        vb = VB + (s if self.shifts else 0)
        for t in range(4):
            for rb in range(RB):
                self.load('buffer_load_dwordx4 %s, v%d, s[16:19], s%d offen offset:%d' % (ar(self.breg(s, t, rb), 4), vb, S_K, (t & 1) * 2048 + rb * 256), s)
            if t & 1:
                k('s_add_u32 s%d, s%d, 4096' % (S_K, S_K))

    def breg(self, s, t, rb):
        return ((s * 4 + t) * self.RB + rb) * 4

    def acc(self, rb, nb):
        return self.ACC + (rb * self.NB + nb) * 4

    def frag(self, i):
        return FA + (i % (self.depth * self.NB)) * 4

    def reads(self, i):
        kt, nb = divmod(i, self.NB)
        s, t = divmod(kt, 4)
        out = []
        for j in range(2):
            if self.NB == 4:
                off = (s % self.slots) * self.sb + t * 4096 + j * 512
                reg, off = RA + 4 * (off >> 16) + nb, off & 0xffff
            else:
                reg, off = RA + (s >> 1), (s & 1) * self.sb + t * 7168 + j * 8 * 224 + nb * 32
            out.append('ds_read_b64_tr_b16 %s, v%d offset:%d' % (vr(self.frag(i) + 2 * j, 2), reg, off))
        return out

    def main(self, init_zero=True, hook=None):
        k, NB = self.k, self.NB
        lg = Cnt(16)
        total = self.nst * 4 * NB
        lead = self.depth * NB

        def rd(i):
            if i >= total:
                return
            if i % (4 * NB) == 0:
                s = i // (4 * NB)
                k('s_waitcnt vmcnt(%d)' % self.vm.wait(s))
                k('s_barrier')
                if s + self.ahead < self.nst:
                    self.stage_loads(s + self.ahead)
                if hook:
                    hook(s)
            for r in self.reads(i):
                k(r)
                lg.issue(i)
        for i in range(lead):
            rd(i)
        for i in range(total):
            kt, nb = divmod(i, NB)
            s, t = divmod(kt, 4)
            k('s_waitcnt lgkmcnt(%d)' % lg.wait(i))
            for rb in range(self.RB):
                d = vr(self.acc(rb, nb), 4)
                k('%s %s, %s, %s, %s' % (M16, d, vr(self.frag(i), 4), ar(self.breg(s, t, rb), 4), '0' if kt == 0 and init_zero else d))
            rd(i + lead)
        self.pf.stamp()

    def chunk_voff(self, dst, kout):
        k = self.k
        k('s_lshr_b32 s6, s%d, 5' % S_R0)
        k('s_mul_i32 s6, s6, %d' % (kout * 64))
        k('s_and_b32 s7, s%d, 31' % S_R0)
        k('s_lshl_b32 s7, s7, 4')
        k('s_add_u32 s6, s6, s7')
        k('v_and_b32 v28, 1, v%d' % VQ)
        k('v_lshrrev_b32 v29, 1, v%d' % VQ)
        k('v_lshl_add_u32 v28, v28, 1, v29')
        k('v_lshlrev_b32 v29, 4, v%d' % VM_)
        k('v_lshl_add_u32 v29, v28, 9, v29')
        k('v_add_u32 v%d, s6, v29' % dst)

    def end(self):
        self.pf.finish(self.tag)
        self.k.label('%s_END' % self.tag)
        self.k('s_endpgm')
        return self.k


def swap_accs(g):
    for p in range(2):
        for r in range(4):
            g.k('v_permlane16_swap_b32 v%d, v%d' % (g.acc(0, 2 * p) + r, g.acc(0, 2 * p + 1) + r))


def g1():
    g = Gemm('g1_kernel', 'G1', 1, 4, 4, B_W1, 1024, 512, WS_U, 512)
    k = g.k
    for s in range(4):
        g.stage_loads(s)
    VO, K1, K2, SC, T = g.FREE, g.FREE + 2, g.FREE + 4, g.FREE + 6, g.FREE + 8
    g.chunk_voff(VO, 512)
    k('s_lshl_b32 s6, s%d, 12' % S_CT)
    k('s_add_u32 s36, s6, %d' % WS_H)
    k('v_mov_b32 v%d, %s' % (K1, f32(GC1)))
    k('v_mov_b32 v%d, %s' % (K2, f32(GC2)))
    k('v_mov_b32 v%d, 1.0' % SC)
    g.main()
    gelu(k, [g.ACC + 2 * i for i in range(8)], T, K1, K2, SC)
    for i in range(8):
        k('v_cvt_pk_bf16_f32 v%d, v%d, v%d' % (T + i, g.ACC + 2 * i, g.ACC + 2 * i + 1))
    for p in range(2):
        for r in range(2):
            k('v_permlane16_swap_b32 v%d, v%d' % (T + 4 * p + r, T + 4 * p + 2 + r))
        k('buffer_store_dwordx4 %s, v%d, s[8:11], s36 offen offset:%d' % (vr(T + 4 * p, 4), VO, 2048 * p))
    return g.end()


def g2():
    g = Gemm('g2_kernel', 'G2', 1, 4, 4, B_W2, 1024, 512, WS_H, 512, shifts=[-1, 1, -2, 2])
    k = g.k
    VO, VS, HB, T = g.FREE, g.FREE + 1, g.FREE + 4, g.FREE + 12
    for s in range(4):
        g.stage_loads(s)
    g.chunk_voff(VO, 512)
    k('s_lshl_b32 s6, s%d, 12' % S_CT)
    k('s_add_u32 s36, s6, %d' % WS_X1)
    k('s_add_u32 s37, s6, %d' % WS_HB)
    for p in range(2):
        g.load('buffer_load_dwordx4 %s, v%d, s[8:11], s37 offen offset:%d' % (vr(HB + 4 * p, 4), VO, 2048 * p), 'hb')
    k('s_lshl_b32 s6, s%d, 6' % S_R0)
    k('s_lshl_b32 s7, s%d, 3' % S_CT)
    k('s_add_u32 s6, s6, s7')
    k('s_add_u32 s38, s6, %d' % WS_STAT)
    k('v_lshlrev_b32 v%d, 6, v%d' % (VS, VM_))
    g.main()
    k('s_waitcnt vmcnt(0)')
    unpack(k, T, HB, 8)
    swap_accs(g)
    for i in range(8):
        k('v_pk_add_f32 %s, %s, %s' % (vr(T + 2 * i, 2), vr(T + 2 * i, 2), vr(g.ACC + 2 * i, 2)))
    for i in range(8):
        k('v_cvt_pk_bf16_f32 v%d, v%d, v%d' % (HB + i, T + 2 * i, T + 2 * i + 1))
    for p in range(2):
        k('buffer_store_dwordx4 %s, v%d, s[8:11], s36 offen offset:%d' % (vr(HB + 4 * p, 4), VO, 2048 * p))
    unpack(k, T, HB, 8)
    m, q = 28, 29
    tree(k, 'v_add_f32', m, list(range(T, T + 16)))
    xsum(k, [m], 30, (4, 5))
    k('v_mul_f32 v%d, %s, v%d' % (m, f32(1.0 / 64), m))
    for i in range(8):
        k('v_pk_add_f32 %s, %s, %s op_sel_hi:[1,0] neg_lo:[0,1] neg_hi:[0,1]' % (vr(T + 2 * i, 2), vr(T + 2 * i, 2), vr(m, 2)))
    k('v_pk_mul_f32 v[30:31], %s, %s' % (vr(T, 2), vr(T, 2)))
    for i in range(1, 8):
        k('v_pk_fma_f32 v[30:31], %s, %s, v[30:31]' % (vr(T + 2 * i, 2), vr(T + 2 * i, 2)))
    k('v_add_f32 v%d, v30, v31' % q)
    xsum(k, [q], 30, (4, 5))
    k('s_mov_b64 exec, 0xffff')
    k('buffer_store_dwordx2 %s, v%d, s[8:11], s38 offen' % (vr(m, 2), VS))
    return g.end()


def g3():
    g = Gemm('g3_kernel', 'G3', 2, 7, 4, B_W3, 3584, 512, WS_X1, 512, ahead=3, vgpr=192)
    k = g.k
    VO, VO2, ST, PR, CS = g.FREE, g.FREE + 1, g.FREE + 4, g.FREE + 12, g.FREE + 24
    T = CS
    k('s_lshl_b32 s6, s%d, 6' % S_R0)
    k('s_add_u32 s36, s6, %d' % WS_STAT)
    k('s_mul_i32 s6, s%d, 448' % S_CT)
    k('s_add_u32 s37, s6, %d' % WS_CS3)
    k('v_lshlrev_b32 v28, 4, v%d' % VQ)
    k('v_lshl_add_u32 v29, v%d, 6, v28' % VM_)
    for rb in range(2):
        g.load('buffer_load_dwordx4 %s, v29, s[8:11], s36 offen offset:%d' % (vr(ST + 4 * rb, 4), 1024 * rb), 'st')
    for nb in range(7):
        g.load('buffer_load_dwordx4 %s, v28, s[8:11], s37 offen offset:%d' % (vr(CS + 4 * nb, 4), 64 * nb), 'cs')
    for s in range(3):
        g.stage_loads(s)
    g.chunk_voff(VO, 1792)
    k('v_lshrrev_b32 v28, 1, v%d' % VQ)
    k('v_lshlrev_b32 v28, 9, v28')
    k('v_lshl_add_u32 v28, v%d, 4, v28' % VM_)
    k('v_and_b32 v29, 1, v%d' % VQ)
    k('v_lshl_add_u32 v28, v29, 3, v28')
    k('v_add_u32 v%d, s6, v28' % VO2)
    k('s_mul_i32 s6, s%d, %d' % (S_CT, 14 * 512))
    k('s_add_u32 s36, s6, %d' % WS_H2)
    k('s_add_u32 s37, s6, %d' % (WS_H2 + 4096))
    k('s_waitcnt vmcnt(%d)' % g.vm.wait('st'))
    mu = [24, 25]
    for rb in range(2):
        k('v_add_f32 v%d, v%d, v%d' % (mu[rb], ST + 4 * rb, ST + 4 * rb + 2))
    xsum(k, mu, 28, (4, 5))
    for rb in range(2):
        a = ST + 4 * rb
        k('v_mul_f32 v%d, %s, v%d' % (mu[rb], f32(0.125), mu[rb]))
        k('v_sub_f32 v%d, v%d, v%d' % (a, a, mu[rb]))
        k('v_sub_f32 v%d, v%d, v%d' % (a + 2, a + 2, mu[rb]))
        k('v_mul_f32 v%d, v%d, v%d' % (a, a, a))
        k('v_fmac_f32 v%d, v%d, v%d' % (a, a + 2, a + 2))
        k('v_add_f32 v%d, v%d, v%d' % (a + 1, a + 1, a + 3))
        k('v_fmac_f32 v%d, %s, v%d' % (a + 1, f32(64.0), a))
    xsum(k, [ST + 1, ST + 5], 28, (4, 5))
    for rb in range(2):
        a, p = ST + 4 * rb, PR + 6 * rb
        k('v_mov_b32 v%d, %s' % (a, f32(1e-5)))
        k('v_fmac_f32 v%d, %s, v%d' % (a, f32(1.0 / 512), a + 1))
        k('v_rsq_f32 v%d, v%d' % (a + 1, a))
        k('v_mul_f32 v%d, v%d, v%d' % (p + 4, a, a + 1))
        k('v_mul_f32 v%d, %s, v%d' % (p, f32(GC1), a + 1))
        k('v_mul_f32 v%d, v%d, v%d' % (a + 2, a + 1, a + 1))
        k('v_mul_f32 v%d, v%d, v%d' % (a + 2, a + 2, a + 1))
        k('v_mul_f32 v%d, %s, v%d' % (p + 2, f32(GC2), a + 2))
    k('s_waitcnt vmcnt(%d)' % g.vm.wait('cs'))
    for rb in range(2):
        for i in range(28):
            k('v_mul_f32 v%d, -v%d, v%d' % (g.acc(rb, 0) + i, mu[rb], CS + i))
    g.main(init_zero=False)
    for rb in range(2):
        a, p = g.acc(rb, 0), PR + 6 * rb
        gelu(k, [a + 2 * i for i in range(14)], T, p, p + 2, p + 4)
        o = FA if rb == 0 else T
        for i in range(14):
            k('v_cvt_pk_bf16_f32 v%d, v%d, v%d' % (o + i, a + 2 * i, a + 2 * i + 1))
        for pp in range(3):
            for r in range(2):
                k('v_permlane16_swap_b32 v%d, v%d' % (o + 4 * pp + r, o + 4 * pp + 2 + r))
            k('buffer_store_dwordx4 %s, v%d, s[8:11], s%d offen offset:%d' % (vr(o + 4 * pp, 4), VO, 36 + (pp >> 1), (pp & 1) * 2048 + rb * 256))
        k('buffer_store_dwordx2 %s, v%d, s[8:11], s37 offen offset:%d' % (vr(o + 12, 2), VO2, 2048 + rb * 256))
    return g.end()


def g4():
    g = Gemm('g4_kernel', 'G4', 1, 4, 14, B_W4, 1024, 1792, WS_H2, 1792, slots=9, ahead=7, vgpr=144)
    k = g.k
    VO, VP, VR, X, X1, GB, T = g.FREE, g.FREE + 1, g.FREE + 2, g.FREE + 4, g.FREE + 12, g.FREE + 20, g.FREE + 36
    for s in range(7):
        g.stage_loads(s)
    g.chunk_voff(VO, 512)
    k('v_lshlrev_b32 v%d, 5, v28' % VP)
    k('v_lshlrev_b32 v29, 4, v28')
    k('v_lshl_add_u32 v%d, v%d, 10, v29' % (VR, VM_))
    k('s_lshl_b32 s6, s%d, 12' % S_CT)
    k('s_add_u32 s36, s6, %d' % WS_X)
    k('s_add_u32 s37, s6, %d' % WS_X1)
    k('s_lshl_b32 s6, s%d, 8' % S_CT)
    k('s_add_u32 s38, s6, %d' % (WS_MOD + 5 * 2048))
    k('s_lshl_b32 s6, s%d, 7' % S_CT)
    k('s_lshl_b32 s7, s%d, 10' % S_R0)
    k('s_add_u32 s39, s6, s7')

    def hook(s):
        if s == 7:
            for p in range(2):
                g.load('buffer_load_dwordx4 %s, v%d, s[8:11], s36 offen offset:%d' % (vr(X + 4 * p, 4), VO, 2048 * p), 'e')
                g.load('buffer_load_dwordx4 %s, v%d, s[8:11], s37 offen offset:%d' % (vr(X1 + 4 * p, 4), VO, 2048 * p), 'e')
                for h in range(2):
                    g.load('buffer_load_dwordx4 %s, v%d, s[8:11], s38 offen offset:%d' % (vr(GB + 8 * p + 4 * h, 4), VP, 128 * p + 16 * h), 'e')
    g.main(hook=hook)
    k('s_waitcnt vmcnt(0)')
    unpack(k, T, X1, 8)
    unpack(k, FA, X, 8)
    swap_accs(g)
    for i in range(8):
        k('v_pk_add_f32 %s, %s, %s' % (vr(T + 2 * i, 2), vr(T + 2 * i, 2), vr(g.ACC + 2 * i, 2)))
    for i in range(8):
        k('v_pk_fma_f32 %s, %s, %s, %s' % (vr(T + 2 * i, 2), vr(T + 2 * i, 2), vr(GB + 2 * i, 2), vr(FA + 2 * i, 2)))
    for i in range(8):
        k('v_cvt_pk_bf16_f32 v%d, v%d, v%d' % (X + i, T + 2 * i, T + 2 * i + 1))
    for p in range(2):
        k('buffer_store_dwordx4 %s, v%d, s[20:23], s39 offen offset:%d' % (vr(X + 4 * p, 4), VR, 64 * p))
    return g.end()


def kernels():
    return [kr(), g1(), g2(), g3(), g4()]
```

```python
import math
import struct
import sys
from asmlib import Kernel, build, check_wrap

NAME = 'adaLN_cond__gqa_block_cached__mixer_s_mlp__prompt'
KB = 1024
MB = 1024 * 1024

A_X, A_K, A_V, A_WQ, A_WO, B_X, B_W1, B_W2, B_W3, B_W4, A_C, A_WMOD, D_OUT, D_DBG, D_WS = [8 * i for i in range(15)]

WS_SIZE = 256 * MB
WS_MOD = 0
WS_CS3 = 16 * KB
WS_STAT = 64 * KB
WS_XN = 1 * MB
WS_X = 3 * MB
WS_HB = 5 * MB
WS_H = 7 * MB
WS_X1 = 9 * MB
WS_H2 = 11 * MB
WS_U = 18 * MB
WS_PART = 20 * MB

LOG2E = math.log2(math.e)
PROF = '--prof' in sys.argv
PROF_BASE = 64


class Prof:
    def __init__(self, k, wgs):
        self.k, self.wgs, self.n = k, wgs, 0
        if PROF:
            k.sgpr = 102
            k('s_memrealtime s[%d:%d]' % (PROF_BASE, PROF_BASE + 1))
            k('s_mov_b32 s100, s2')

    def stamp(self):
        if PROF:
            self.n += 1
            b = PROF_BASE + 2 * self.n
            self.k('%s s[%d:%d]' % ('s_memrealtime' if '--real' in sys.argv else 's_memtime', b, b + 1))

    def finish(self, tag):
        if not PROF:
            return
        k = self.k
        self.stamp()
        b = PROF_BASE + 2 * (self.n + 1)
        k('s_memrealtime s[%d:%d]' % (b, b + 1))
        k('s_load_dwordx2 s[56:57], s[0:1], %d' % D_DBG)
        k('s_waitcnt lgkmcnt(0) vmcnt(0)')
        srd(k, 60, 56, 256)
        k('s_mov_b32 s58, -1')
        for i, w in enumerate(self.wgs):
            k('s_cmp_eq_u32 s100, %d' % w)
            k('s_cselect_b32 s58, %d, s58' % (i * 64))
        k('s_cmp_eq_u32 s58, -1')
        k('s_cbranch_scc1 %s_PROF_END' % tag)
        k('v_cmp_eq_u32 vcc, 0, v0')
        k('s_and_saveexec_b64 s[56:57], vcc')
        k('s_cbranch_execz %s_PROF_END' % tag)
        k('v_mov_b32 v2, 0')
        for i in range(self.n + 2):
            b = PROF_BASE + 2 * i
            ref = PROF_BASE if i in (0, self.n + 1) else PROF_BASE + 2
            if i == 0:
                k('v_mov_b32 v3, s%d' % b)
            else:
                k('s_sub_u32 s59, s%d, s%d' % (b, ref))
                k('v_mov_b32 v3, s59')
            k('buffer_store_dword v3, v2, s[60:63], s58 offen offset:%d' % (4 * i))
        k.label('%s_PROF_END' % tag)


def f32(x):
    return '0x%08x' % struct.unpack('<I', struct.pack('<f', x))[0]


def srd(k, s, ptr, size):
    k('s_mov_b32 s%d, s%d' % (s, ptr))
    k('s_mov_b32 s%d, s%d' % (s + 1, ptr + 1))
    k('s_mov_b32 s%d, 0x%x' % (s + 2, size))
    k('s_mov_b32 s%d, 0x00020000' % (s + 3))


def vr(a, n=1):
    return 'v%d' % a if n == 1 else 'v[%d:%d]' % (a, a + n - 1)


def ar(a, n=1):
    return 'a%d' % a if n == 1 else 'a[%d:%d]' % (a, a + n - 1)


def dpp_sum16(k, regs):
    for sh in (8, 4, 2, 1):
        for r in regs:
            k('v_add_f32_dpp v%d, v%d, v%d row_ror:%d row_mask:0xf bank_mask:0xf' % (r, r, r, sh))


def k0():
    k = Kernel('pre_kernel', 280, 256, lds=2048, vgpr=72, sgpr=40)
    k('s_cmp_ge_u32 s2, 280')
    k('s_cbranch_scc1 K0_END')
    k('s_load_dwordx2 s[4:5], s[0:1], %d' % D_WS)
    k('s_load_dwordx2 s[6:7], s[0:1], %d' % A_X)
    k('s_load_dwordx2 s[20:21], s[0:1], %d' % A_WMOD)
    k('s_load_dwordx2 s[22:23], s[0:1], %d' % B_W3)
    k('s_load_dwordx2 s[24:25], s[0:1], %d' % A_C)
    k('s_waitcnt lgkmcnt(0)')
    srd(k, 16, 4, WS_SIZE)
    k('s_cmp_ge_u32 s2, 152')
    k('s_cbranch_scc1 K0_LN')
    srd(k, 28, 24, 1024)
    k('v_lshrrev_b32 v1, 2, v0')
    k('v_lshlrev_b32 v2, 1, v1')
    k('s_cmp_ge_u32 s2, 96')
    k('s_cbranch_scc1 K0_CS')
    srd(k, 8, 20, 512 * 6144)
    k('s_mov_b32 s12, 6144')
    k('s_lshl_b32 s15, s2, 6')
    k('s_lshl_b32 s26, s2, 7')
    for i in range(8):
        k('buffer_load_ushort v%d, v2, s[28:31], 0 offen offset:%d' % (40 + i, 128 * i))
    k('s_branch K0_GO')
    k.label('K0_CS')
    srd(k, 8, 22, 512 * 3584)
    k('s_mov_b32 s12, 3584')
    k('s_sub_u32 s3, s2, 96')
    k('s_lshl_b32 s15, s3, 6')
    k('s_lshl_b32 s26, s3, 7')
    k('s_add_u32 s26, s26, %d' % WS_CS3)
    k.label('K0_GO')
    k('v_mul_lo_u32 v3, v1, s12')
    k('v_and_b32 v4, 3, v0')
    k('v_lshl_add_u32 v3, v4, 4, v3')
    k('s_lshl_b32 s13, s12, 6')
    for i in range(8):
        k('buffer_load_dwordx4 %s, v3, s[8:11], s15 offen' % vr(8 + 4 * i, 4))
        k('s_add_u32 s15, s15, s13')
    k('s_cmp_ge_u32 s2, 96')
    k('s_cbranch_scc1 K0_ONES')
    k('s_waitcnt vmcnt(8)')
    for i in range(8):
        k('v_lshlrev_b32 v%d, 16, v%d' % (40 + i, 40 + i))
    for i in range(8):
        k('v_mul_f32 v%d, %s, v%d' % (48 + i, f32(-LOG2E), 40 + i))
    for i in range(8):
        k('v_exp_f32 v%d, v%d' % (48 + i, 48 + i))
    for i in range(8):
        k('v_add_f32 v%d, 1.0, v%d' % (48 + i, 48 + i))
    for i in range(8):
        k('v_rcp_f32 v%d, v%d' % (48 + i, 48 + i))
    for i in range(8):
        k('v_mul_f32 v%d, v%d, v%d' % (40 + i, 40 + i, 48 + i))
    for i in range(8):
        k('v_cvt_pk_bf16_f32 v%d, v%d, v%d' % (40 + i, 40 + i, 40 + i))
    for i in range(8):
        k('v_lshlrev_b32 v%d, 16, v%d' % (40 + i, 40 + i))
    k('s_branch K0_ACC')
    k.label('K0_ONES')
    for i in range(8):
        k('v_mov_b32 v%d, 1.0' % (40 + i))
    k.label('K0_ACC')
    for j in range(8):
        k('v_mov_b32 v%d, 0' % (56 + j))
    for i in range(8):
        k('s_waitcnt vmcnt(%d)' % (7 - i))
        for j in range(4):
            k('v_lshlrev_b32 v5, 16, v%d' % (8 + 4 * i + j))
            k('v_and_b32 v6, 0xffff0000, v%d' % (8 + 4 * i + j))
            k('v_fmac_f32 v%d, v%d, v5' % (56 + 2 * j, 40 + i))
            k('v_fmac_f32 v%d, v%d, v6' % (57 + 2 * j, 40 + i))
    for sh in (8, 4):
        for j in range(8):
            k('v_add_f32_dpp v%d, v%d, v%d row_ror:%d row_mask:0xf bank_mask:0xf' % (56 + j, 56 + j, 56 + j, sh))
    k('v_lshrrev_b32 v1, 4, v0')
    k('v_lshlrev_b32 v1, 7, v1')
    k('v_lshl_add_u32 v1, v4, 5, v1')
    k('ds_write_b128 v1, v[56:59]')
    k('ds_write_b128 v1, v[60:63] offset:16')
    k('v_and_b32 v2, 31, v0')
    k('v_lshlrev_b32 v2, 2, v2')
    k('s_waitcnt lgkmcnt(0)')
    k('s_barrier')
    for p in range(16):
        k('ds_read_b32 v%d, v2 offset:%d' % (8 + p, 128 * p))
    k('s_waitcnt lgkmcnt(0)')
    for st in (8, 4, 2, 1):
        for p in range(st):
            k('v_add_f32 v%d, v%d, v%d' % (8 + p, 8 + p, 8 + p + st))
    k('s_cmp_ge_u32 s2, 96')
    k('s_cbranch_scc1 K0_ST')
    k('v_cvt_pk_bf16_f32 v8, v8, v8')
    k('v_lshlrev_b32 v8, 16, v8')
    k('s_lshr_b32 s3, s2, 4')
    k('s_cmp_eq_u32 s3, 1')
    k('s_cbranch_scc1 K0_ONEP')
    k('s_cmp_eq_u32 s3, 4')
    k('s_cbranch_scc0 K0_ST')
    k.label('K0_ONEP')
    k('v_add_f32 v8, 1.0, v8')
    k('v_cvt_pk_bf16_f32 v8, v8, v8')
    k('v_lshlrev_b32 v8, 16, v8')
    k.label('K0_ST')
    k('v_cmp_gt_u32 vcc, 32, v0')
    k('s_and_saveexec_b64 s[34:35], vcc')
    k('s_cbranch_execz K0_END')
    k('buffer_store_dword v8, v2, s[16:19], s26 offen')
    k('s_endpgm')
    k.label('K0_LN')
    srd(k, 8, 6, 2 * MB)
    k('s_sub_u32 s3, s2, 152')
    k('s_lshl_b32 s3, s3, 14')
    k('v_lshrrev_b32 v1, 4, v0')
    k('v_and_b32 v2, 15, v0')
    k('v_lshlrev_b32 v1, 10, v1')
    k('v_lshl_add_u32 v1, v2, 4, v1')
    for i in range(4):
        k('buffer_load_dwordx4 %s, v1, s[8:11], s3 offen offset:%d' % (vr(8 + 4 * i, 4), 256 * i))
    k('s_add_u32 s26, s3, %d' % WS_XN)
    k('v_mov_b32 v2, 0')
    k('v_mov_b32 v3, 0')
    for i in range(4):
        k('s_waitcnt vmcnt(%d)' % (3 - i))
        for j in range(4):
            e = 24 + 8 * i + 2 * j
            k('v_lshlrev_b32 v%d, 16, v%d' % (e, 8 + 4 * i + j))
            k('v_and_b32 v%d, 0xffff0000, v%d' % (e + 1, 8 + 4 * i + j))
            k('v_add_f32 v2, v2, v%d' % e)
            k('v_add_f32 v3, v3, v%d' % (e + 1))
    k('v_add_f32 v2, v2, v3')
    dpp_sum16(k, [2])
    k('v_mul_f32 v2, %s, v2' % f32(1.0 / 512))
    k('v_mov_b32 v3, 0')
    k('v_mov_b32 v4, 0')
    for e in range(32):
        k('v_sub_f32 v%d, v%d, v2' % (24 + e, 24 + e))
        k('v_fmac_f32 v%d, v%d, v%d' % (3 + (e & 1), 24 + e, 24 + e))
    k('v_add_f32 v3, v3, v4')
    dpp_sum16(k, [3])
    k('v_mov_b32 v4, %s' % f32(1e-5))
    k('v_fmac_f32 v4, %s, v3' % f32(1.0 / 512))
    k('v_rsq_f32 v4, v4')
    for i in range(4):
        for j in range(4):
            e = 24 + 8 * i + 2 * j
            k('v_mul_f32 v%d, v%d, v4' % (e, e))
            k('v_mul_f32 v%d, v%d, v4' % (e + 1, e + 1))
            k('v_cvt_pk_bf16_f32 v%d, v%d, v%d' % (8 + 4 * i + j, e, e + 1))
        k('buffer_store_dwordx4 %s, v1, s[16:19], s26 offen offset:%d' % (vr(8 + 4 * i, 4), 256 * i))
    k.label('K0_END')
    k('s_endpgm')
    return k


KA, VA, DK, DV, DW, L0, TM = 2, 10, 14, 18, 19, 23, 25
SB, PB, NM, QB = 32, 96, 128, 160
HA, WA, WA2, TT = 224, 232, 236, 240
AO, AK, AV = 0, 128, 160
LDS_K, LDS_V = 64 * KB, 112 * KB
LDS_FLAG = LDS_V + 32 * KB + 8 * KB
S_G, S_RB, S_W = 3, 4, 5
R_WS, R_K, R_V, R_WQ, R_WO = 8, 12, 16, 20, 24
S_KO, S_VO, S_WOFF, S_CNT, S_W4K, S_RING, S_FB = 28, 29, 30, 31, 32, 33, 34
MF = 'v_mfma_f32_32x32x16_bf16'


def S(par, qb):
    return SB + (par * 2 + qb) * 16


def P(par, qb):
    return PB + (par * 2 + qb) * 8


def dma(vo, rs, so, imm):
    return 'buffer_load_dwordx4 v%d, s[%d:%d], s%d offen offset:%d lds' % (vo, rs, rs + 3, so, imm)


def kdma(slot):
    return (['s_add_u32 m0, s%d, %d' % (S_W4K, LDS_K + slot * 16 * KB)],
            [dma(DK + j, R_K, S_KO, j * KB) for j in range(4)],
            ['s_add_u32 s%d, s%d, %d' % (S_KO, S_KO, 16 * KB)])


def vdma(slot):
    return (['s_add_u32 m0, s%d, %d' % (S_W4K, LDS_V + slot * 16 * KB)],
            [dma(DV, R_V, S_VO, j * KB) for j in range(4)],
            ['s_add_u32 s%d, s%d, %d' % (S_VO, S_VO, 16 * KB)])


OPOS = [LDS_K + 32 * KB, LDS_K, LDS_K + 16 * KB, LDS_V, LDS_V + 16 * KB]


def wodma(t):
    return (['s_add_u32 m0, s%d, %d' % (S_W4K, OPOS[t % 5])],
            [dma(DW + j, R_WO, S_WOFF, j * KB) for j in range(4)],
            ['s_add_u32 s%d, s%d, %d' % (S_WOFF, S_WOFF, 16 * KB)])


def wqdma(t):
    return (['s_add_u32 m0, s%d, %d' % (S_RING, (t % 5) * 4 * KB)],
            [dma(DW + j, R_WQ, S_WOFF, j * KB) for j in range(4)],
            ['s_add_u32 s%d, s%d, %d' % (S_WOFF, S_WOFF, 128 * KB)])


def flat(g):
    return g[0] + ['s_nop 0'] + g[1] + g[2]


def proj_reads(t, is_o):
    p = t & 1
    out = []
    for qb in range(2):
        out.append('ds_read_b128 %s, v%d offset:%d' % (ar(AV + p * 8 + qb * 4, 4), HA + (t & 7), qb * 32 * KB + (t >> 3) * 256))
    for db in range(4):
        for j in range(2):
            if is_o:
                off = OPOS[t % 5] - LDS_K
                reg = WA + db
                if off >= 64 * KB:
                    off -= 16 * KB
                    reg = WA2 + db
            else:
                off = (t % 5) * 4 * KB
                reg = WA + db
            out.append('ds_read_b64_tr_b16 %s, v%d offset:%d' % (ar(AK + p * 16 + db * 4 + 2 * j, 2), reg, off + j * KB))
    return out


def proj_loop(k, is_o, extra=None):
    grp = wodma if is_o else wqdma
    extra = list(extra or [])
    k('s_waitcnt vmcnt(16)')
    k.emit(proj_reads(0, is_o))
    for t in range(32):
        p = t & 1
        vm = 4 * (min(t + 4, 31) - (t + 1)) if t < 31 else None
        k('s_waitcnt lgkmcnt(0)' + (' vmcnt(%d)' % vm if vm is not None else ''))
        mf = []
        for db in range(4):
            for qb in range(2):
                d = vr(SB + (db * 2 + qb) * 16, 16)
                mf.append('%s %s, %s, %s, %s' % (MF, d, ar(AK + p * 16 + db * 4, 4), ar(AV + p * 8 + qb * 4, 4), d if t else '0'))
        gaps = [[] for _ in range(8)]
        if t < 31:
            rd = proj_reads(t + 1, is_o)
            for i, r in enumerate(rd):
                gaps[i // 2].append(r)
        if t + 5 < 32:
            g = grp(t + 5)
            gaps[3] += g[0]
            for j in range(4):
                gaps[4 + j].append(g[1][j])
            gaps[7] += g[2]
        for gi in range(5, 8):
            for _ in range(2):
                if extra:
                    gaps[gi].append(extra.pop(0))
        k.interleave(mf, gaps)
    assert not extra


def att_iter(k, i, qk=True, pv=True, sm=True, kread=None, vread=None, groups=()):
    par = i & 1
    mf = []
    for t in range(8):
        for qb in range(2):
            d = vr(S(par ^ 1, qb), 16)
            c = d if t else vr(NM + qb * 16, 16)
            mf.append('%s %s, %s, %s, %s' % (MF, d, ar(AK + 4 * t, 4), vr(QB + (qb * 8 + t) * 4, 4), c) if qk else None)
    for db in range(4):
        for t in range(2):
            for qb in range(2):
                d = ar(AO + (db * 2 + qb) * 16, 16)
                mf.append('%s %s, %s, %s, %s' % (MF, d, ar(AV + (db * 2 + t) * 4, 4), vr(P(par ^ 1, qb) + 4 * t, 4), d) if pv else None)
    gaps = [[] for _ in range(32)]

    def sreg(e):
        return S(par, e >> 4) + (e & 15)

    def add(e):
        return 'v_add_f32 v%d, v%d, v%d' % (L0 + (e >> 4), L0 + (e >> 4), sreg(e))

    def cvt(e):
        return 'v_cvt_pk_bf16_f32 v%d, v%d, v%d' % (P(par, e >> 4) + ((e & 15) >> 1), sreg(e), sreg(e + 1))

    if sm:
        for g in range(32):
            gaps[g].append('v_exp_f32 v%d, v%d' % (sreg(g), sreg(g)))
            if g >= 1:
                gaps[g].append(add(g - 1))
            if g >= 2 and g % 2 == 0:
                gaps[g].append(cvt(g - 2))
        gaps[31] += [add(31), cvt(30)]
    if vread is not None:
        rd = []
        for db in range(4):
            for t in range(2):
                for j in range(2):
                    rd.append('ds_read_b64_tr_b16 %s, v%d offset:%d' % (ar(AV + (db * 2 + t) * 4 + 2 * j, 2), VA + db, vread + (16 * t + 8 * j) * 256))
        g = 0
        while rd:
            for _ in range(2 if g % 2 else 1):
                if rd:
                    gaps[g].append(rd.pop(0))
            g += 1
        gaps[15].append('s_waitcnt lgkmcnt(0)')
    if kread is not None:
        for t in range(8):
            gaps[16 + t].append('ds_read_b128 %s, v%d offset:%d' % (ar(AK + 4 * t, 4), KA + t, kread))
    slots = [(11, 13), (25, 27)]
    if len(groups) == 2:
        for gi, g in enumerate(groups):
            base = 11 if gi == 0 else 24
            gaps[base] += g[0]
            for j in range(4):
                gaps[base + 1 + j].append(g[1][j])
            gaps[base + 5] += g[2]
    elif len(groups) == 1:
        g = groups[0]
        gaps[10] += g[0]
        pos = [slots[0][0], slots[0][1], slots[1][0], slots[1][1]]
        for j in range(4):
            gaps[pos[j]].append(g[1][j])
        gaps[29] += g[2]
    if '--m16x' in sys.argv:
        M16 = 'v_mfma_f32_16x16x32_bf16'
        mf = []
        for ks in range(4):
            for kb in range(2):
                for q4 in range(4):
                    d = vr(S(par ^ 1, 0) + (q4 * 2 + kb) * 4, 4)
                    c = d if ks else vr(NM + q4 * 4, 4)
                    mf.append('%s %s, %s, %s, %s' % (M16, d, ar(AK + 4 * (ks * 2 + kb), 4), vr(QB + (q4 * 4 + ks) * 4, 4), c) if qk else None)
        for db in range(8):
            for q4 in range(4):
                d = ar(AO + (db * 4 + q4) * 4, 4)
                mf.append('%s %s, %s, %s, %s' % (M16, d, ar(AV + db * 4, 4), vr(P(par ^ 1, 0) + 4 * q4, 4), d) if pv else None)
        g2 = []
        for g in gaps:
            if g and g[0].startswith('v_exp'):
                g2 += [g[:1], g[1:]]
            else:
                g2 += [g[:len(g) // 2], g[len(g) // 2:]]
        gaps = g2
    k.interleave(mf, gaps)


def att_body(k, n, vm=8):
    k('s_waitcnt vmcnt(%d) lgkmcnt(0)' % vm)
    k('s_barrier')
    ks = ((n + 1) % 3) * 16 * KB
    vs = (n % 3) * 16 * KB
    g0 = kdma(n % 3) if n + 3 <= 31 else wodma(n - 29)
    g1 = vdma((n + 2) % 3) if n + 2 <= 32 else None
    i = 2 * n
    att_iter(k, i, pv=(i > 0), kread=(ks if i + 2 < 64 else None), vread=(vs if i > 0 else None), groups=[g0])
    k('s_waitcnt lgkmcnt(0)')
    i += 1
    att_iter(k, i, qk=(i + 1 < 64), kread=(ks + 8 * KB if i + 2 < 64 else None), vread=vs + 8 * KB, groups=[g1] if g1 else [])


def k1():
    k = Kernel('attn_kernel', 256, 256, lds=160 * KB, vgpr=256, agpr=256, sgpr=64)
    k('s_cmp_ge_u32 s2, 256')
    k('s_cbranch_scc1 K1_END')
    pf = Prof(k, [0, 9, 130, 255])
    pf.stamp()
    k('s_load_dwordx2 s[40:41], s[0:1], %d' % D_WS)
    k('s_load_dwordx4 s[44:47], s[0:1], %d' % A_K)
    k('s_load_dwordx4 s[48:51], s[0:1], %d' % A_WQ)
    k('v_lshrrev_b32 v1, 6, v0')
    k('s_and_b32 s%d, s2, 7' % S_G)
    k('s_lshr_b32 s%d, s2, 3' % S_RB)
    k('v_readfirstlane_b32 s%d, v1' % S_W)
    k('v_and_b32 v1, 63, v0')
    k('s_lshl_b32 s%d, s%d, 12' % (S_W4K, S_W))
    k('s_mul_i32 s%d, s%d, %d' % (S_RING, S_W, 20 * KB))
    k('s_add_u32 s%d, s%d, %d' % (S_RING, S_RING, 80 * KB))
    k('s_mov_b32 s%d, 0' % S_FB)
    k('v_lshrrev_b32 v27, 5, v1')
    k('v_and_b32 v28, 31, v1')
    k('v_and_b32 v29, 15, v1')
    k('v_xor_b32 v30, v27, v29')
    k('v_lshlrev_b32 v30, 4, v30')
    k('v_lshl_add_u32 v%d, v28, 10, v30' % HA)
    k('v_lshl_add_u32 v%d, v28, 8, v30' % KA)
    k('v_add_u32 v%d, %d, v%d' % (KA, LDS_K, KA))
    for t in range(1, 8):
        k('v_xor_b32 v%d, %d, v%d' % (HA + t, t << 5, HA))
        k('v_xor_b32 v%d, %d, v%d' % (KA + t, t << 5, KA))
    k('v_bfe_u32 v28, v1, 2, 2')
    k('v_lshlrev_b32 v30, 8, v28')
    k('v_lshl_add_u32 v30, v28, 6, v30')
    k('v_bfe_u32 v31, v1, 4, 1')
    k('v_lshl_add_u32 v30, v31, 5, v30')
    k('v_and_b32 v31, 1, v1')
    k('v_lshl_add_u32 v30, v31, 4, v30')
    k('v_bfe_u32 v31, v1, 1, 1')
    k('v_lshl_add_u32 v30, v31, 3, v30')
    k('v_lshl_add_u32 v%d, v27, 10, v30' % VA)
    k('v_add_u32 v%d, %d, v%d' % (VA, LDS_V, VA))
    k('v_lshl_add_u32 v26, v27, 11, v30')
    k('v_add_u32 v%d, s%d, v26' % (WA, S_RING))
    for db in range(1, 4):
        k('v_xor_b32 v%d, %d, v%d' % (VA + db, db << 6, VA))
        k('v_xor_b32 v%d, %d, v%d' % (WA + db, db << 6, WA))
    k('v_lshrrev_b32 v27, 4, v1')
    k('v_xor_b32 v28, v29, v27')
    k('v_lshlrev_b32 v28, 4, v28')
    k('v_lshl_add_u32 v%d, v27, 8, v28' % DK)
    for j in range(1, 4):
        k('v_xor_b32 v%d, %d, v%d' % (DK + j, j << 6, DK))
    k('v_lshlrev_b32 v28, 2, v27')
    k('v_xor_b32 v28, v29, v28')
    k('v_lshlrev_b32 v28, 4, v28')
    k('v_lshl_add_u32 v%d, v27, 8, v28' % DV)
    k('v_lshl_add_u32 v%d, v27, 13, v28' % DW)
    k('v_lshl_add_u32 v25, v27, 10, v28')
    for j in range(1, 4):
        k('v_add_u32 v%d, %d, v%d' % (DW + j, j * 31 * KB, DW))
    k('v_lshlrev_b32 v30, 4, v1')
    k('v_lshlrev_b32 v31, 5, v1')
    k('s_waitcnt lgkmcnt(0)')
    srd(k, R_WS, 40, WS_SIZE)
    k('s_lshl_b32 s6, s%d, 16' % S_RB)
    k('s_lshl_b32 s7, s%d, 14' % S_W)
    k('s_add_u32 s6, s6, s7')
    k('s_add_u32 s6, s6, %d' % WS_XN)
    k('buffer_load_dwordx4 v[96:99], v31, s[8:11], 0 offen offset:%d' % (WS_MOD + 2048))
    k('buffer_load_dwordx4 v[100:103], v31, s[8:11], 0 offen offset:%d' % (WS_MOD + 2048 + 16))
    k('buffer_load_dwordx4 v[104:107], v31, s[8:11], 0 offen offset:%d' % (WS_MOD))
    k('buffer_load_dwordx4 v[108:111], v31, s[8:11], 0 offen offset:%d' % (WS_MOD + 16))
    for i in range(16):
        k('buffer_load_dwordx4 %s, v30, s[8:11], s6 offen offset:%d' % (vr(32 + 4 * i, 4), (i & 3) * KB))
        if i & 3 == 3 and i < 15:
            k('s_add_u32 s6, s6, 4096')
    k('s_lshl_b32 s6, s%d, 19' % S_G)
    k('s_add_u32 s44, s44, s6')
    k('s_addc_u32 s45, s45, 0')
    k('s_add_u32 s46, s46, s6')
    k('s_addc_u32 s47, s47, 0')
    srd(k, R_K, 44, 512 * KB)
    srd(k, R_V, 46, 512 * KB)
    k('s_lshl_b32 s7, s%d, 8' % S_W)
    k('s_add_u32 s6, s6, s7')
    k('s_add_u32 s50, s50, s6')
    k('s_addc_u32 s51, s51, 0')
    srd(k, R_WO, 50, 0)
    k('s_sub_u32 s%d, %d, s7' % (R_WO + 2, 512 * KB))
    k('s_lshl_b32 s6, s%d, 10' % S_G)
    k('s_add_u32 s6, s6, s7')
    k('s_add_u32 s48, s48, s6')
    k('s_addc_u32 s49, s49, 0')
    srd(k, R_WQ, 48, 0)
    k('s_sub_u32 s%d, %d, s6' % (R_WQ + 2, 4 * MB))
    k('s_mov_b32 s%d, s%d' % (S_KO, S_W4K))
    k('s_mov_b32 s%d, 0' % S_WOFF)
    k.emit(flat(kdma(0)))
    for t in range(5):
        k.emit(flat(wqdma(t)))
    cs = LOG2E / math.sqrt(128.0)
    k('s_lshl_b32 s7, s%d, 14' % S_W)
    k('v_add_u32 v30, s7, v30')
    k('s_waitcnt vmcnt(40)')
    for j in range(16):
        k('v_mul_f32 v%d, %s, v%d' % (96 + j, f32(cs), 96 + j))
    for i in range(16):
        k('s_waitcnt vmcnt(%d)' % (39 - i))
        b = 32 + 4 * i
        t0 = 112 + (i & 1) * 8
        for j in range(4):
            k('v_lshlrev_b32 v%d, 16, v%d' % (t0 + 2 * j, b + j))
            k('v_and_b32 v%d, 0xffff0000, v%d' % (t0 + 2 * j + 1, b + j))
        for j in range(4):
            k('v_pk_fma_f32 %s, %s, %s, %s' % (vr(t0 + 2 * j, 2), vr(t0 + 2 * j, 2), vr(96 + 2 * j, 2), vr(104 + 2 * j, 2)))
        k('v_xor_b32 v31, %d, v30' % (i << 4))
        for j in range(4):
            k('v_cvt_pk_bf16_f32 v%d, v%d, v%d' % (b + j, t0 + 2 * j, t0 + 2 * j + 1))
        k('ds_write_b128 v31, %s offset:%d' % (vr(b, 4), i * KB))
    k('s_waitcnt lgkmcnt(0)')
    k('s_barrier')
    pf.stamp()
    proj_loop(k, False, extra=['v_accvgpr_write_b32 a%d, 0' % i for i in range(128)])
    k('s_barrier')
    pf.stamp()
    k('s_sub_u32 s%d, s%d, %d' % (S_VO, S_W4K, 8 * KB))
    k('s_mov_b32 s%d, 0' % S_WOFF)
    for j in range(4):
        k('v_add_u32 v%d, %d, v25' % (DW + j, j * 3 * KB))
    k.emit(flat(kdma(1)))
    k.emit(flat(vdma(0)))
    k.emit(flat(kdma(2)))
    k.emit(flat(vdma(1)))
    for t in range(8):
        k('ds_read_b128 %s, v%d offset:0' % (ar(AK + 4 * t, 4), KA + t))
    for qb in range(2):
        for t in range(8):
            a = SB + ((t >> 1) * 2 + qb) * 16 + 8 * (t & 1)
            for j in range(4):
                k('v_cvt_pk_bf16_f32 v%d, v%d, v%d' % (QB + (qb * 8 + t) * 4 + j, a + 2 * j, a + 2 * j + 1))
    k.label('K1_PRE')
    k('s_waitcnt lgkmcnt(0)')
    for qb in range(2):
        for t in range(8):
            d = vr(S(0, qb), 16)
            k('%s %s, %s, %s, %s' % (MF, d, ar(AK + 4 * t, 4), vr(QB + (qb * 8 + t) * 4, 4), d if t else '0'))
            if qb == 1:
                k('ds_read_b128 %s, v%d offset:%d' % (ar(AK + 4 * t, 4), KA + t, 8 * KB))
    k('v_mov_b32 v%d, 0' % L0)
    k('v_mov_b32 v%d, 0' % (L0 + 1))
    for qb in range(2):
        s = S(0, qb)
        m = 27 + qb
        k('v_max3_f32 v%d, v%d, v%d, v%d' % (m, s, s + 1, s + 2))
        for r in range(3, 15, 2):
            k('v_max3_f32 v%d, v%d, v%d, v%d' % (m, m, s + r, s + r + 1))
        k('v_max_f32 v%d, v%d, v%d' % (m, m, s + 15))
        k('v_mov_b32 v%d, v%d' % (29 + qb, m))
    for qb in range(2):
        k('v_permlane32_swap_b32 v%d, v%d' % (27 + qb, 29 + qb))
    for qb in range(2):
        k('v_max_f32 v%d, v%d, v%d' % (27 + qb, 27 + qb, 29 + qb))
    k('s_cmp_eq_u32 s%d, 0' % S_FB)
    k('s_cbranch_scc1 K1_M0')
    k('v_mov_b32 v27, v%d' % TT)
    k('v_mov_b32 v28, v%d' % (TT + 1))
    k.label('K1_M0')
    for qb in range(2):
        for r in range(16):
            k('v_sub_f32 v%d, v%d, v%d' % (S(0, qb) + r, S(0, qb) + r, 27 + qb))
            k('v_sub_f32 v%d, 0, v%d' % (NM + qb * 16 + r, 27 + qb))
    pf.stamp()
    att_body(k, 0)
    pf.stamp()
    k('s_mov_b32 s%d, 9' % S_CNT)
    k('.p2align 6')
    k.label('K1_LOOP')
    i0 = len(k.lines)
    for n in (1, 2, 3):
        att_body(k, n)
    k('s_sub_u32 s%d, s%d, 1' % (S_CNT, S_CNT))
    k('s_cmp_lg_u32 s%d, 0' % S_CNT)
    k('s_cbranch_scc1 K1_LOOP')
    w = check_wrap(k.lines[i0:], k.lines[i0:])
    assert not w, w
    pf.stamp()
    for n in (28, 29, 30, 31):
        att_body(k, n)
    k('s_waitcnt vmcnt(4) lgkmcnt(0)')
    k('s_barrier')
    att_iter(k, 64, qk=False, sm=False, vread=2 * 16 * KB, groups=[wodma(3), wodma(4)])
    pf.stamp()
    for qb in range(2):
        k('v_mov_b32 v%d, v%d' % (27 + qb, L0 + qb))
    for qb in range(2):
        k('v_permlane32_swap_b32 v%d, v%d' % (L0 + qb, 27 + qb))
    for qb in range(2):
        k('v_add_f32 v%d, v%d, v%d' % (L0 + qb, L0 + qb, 27 + qb))
    k('s_mov_b32 s6, %s' % f32(2.0 ** 40))
    k('v_cmp_nle_f32 s[36:37], v%d, s6' % L0)
    k('v_cmp_nle_f32 s[38:39], v%d, s6' % (L0 + 1))
    k('v_rcp_f32 v%d, v%d' % (TT + 2, L0))
    k('v_rcp_f32 v%d, v%d' % (TT + 4, L0 + 1))
    k('s_or_b64 s[36:37], s[36:37], s[38:39]')
    k('s_or_b32 s36, s36, s37')
    k('s_lshl_b32 s7, s%d, 2' % S_W)
    k('s_add_u32 s7, s7, %d' % LDS_FLAG)
    k('v_mov_b32 v27, s7')
    k('v_mov_b32 v28, s36')
    k('ds_write_b32 v27, v28')
    k('s_lshl_b32 s7, s%d, 8' % S_W)
    for t in range(8):
        k('v_add_u32 v%d, s7, v%d' % (KA + t, HA + t))
    for db in range(4):
        for qb in range(2):
            a = AO + (db * 2 + qb) * 16
            tb = SB + ((db * 2 + qb) & 1) * 24
            for r in range(16):
                k('v_accvgpr_read_b32 v%d, a%d' % (tb + r, a + r))
            for r in range(0, 16, 2):
                k('v_pk_mul_f32 %s, %s, %s op_sel_hi:[1,0]' % (vr(tb + r, 2), vr(tb + r, 2), vr(TT + 2 + 2 * qb, 2)))
            for r in range(0, 16, 2):
                k('v_cvt_pk_bf16_f32 v%d, v%d, v%d' % (tb + 16 + r // 2, tb + r, tb + r + 1))
            for j in range(2):
                k('ds_write_b128 v%d, %s offset:%d' % (KA + 2 * db + j, vr(tb + 16 + 4 * j, 4), qb * 32 * KB))
    k('v_add_u32 v%d, s%d, v26' % (WA, S_W4K))
    k('v_add_u32 v%d, %d, v%d' % (WA, LDS_K, WA))
    for db in range(1, 4):
        k('v_xor_b32 v%d, %d, v%d' % (WA + db, db << 6, WA))
    for db in range(4):
        k('v_add_u32 v%d, %d, v%d' % (WA2 + db, 16 * KB, WA + db))
    k('v_mov_b32 v27, %d' % LDS_FLAG)
    k('s_waitcnt lgkmcnt(0)')
    k('s_barrier')
    k('ds_read_b128 v[28:31], v27')
    k('s_waitcnt lgkmcnt(0)')
    k('v_or3_b32 v28, v28, v29, v30')
    k('v_or_b32 v28, v28, v31')
    k('v_readfirstlane_b32 s6, v28')
    k('s_cmp_eq_u32 s6, 0')
    k('s_cbranch_scc1 K1_OPROJ')
    k('s_cmp_eq_u32 s%d, 0' % S_FB)
    k('s_cbranch_scc1 K1_FALLBACK')
    k.label('K1_OPROJ')
    pf.stamp()
    proj_loop(k, True)
    pf.stamp()
    k('s_lshl_b32 s6, s%d, 21' % S_G)
    k('s_lshl_b32 s7, s%d, 16' % S_RB)
    k('s_add_u32 s6, s6, s7')
    k('s_lshl_b32 s7, s%d, 13' % S_W)
    k('s_add_u32 s6, s6, s7')
    k('s_add_u32 s36, s6, %d' % WS_PART)
    k('s_add_u32 s37, s6, %d' % (WS_PART + 4 * KB))
    k('s_add_u32 s38, s6, %d' % (WS_PART + 32 * KB))
    k('s_add_u32 s39, s6, %d' % (WS_PART + 36 * KB))
    k('v_lshlrev_b32 v30, 4, v1')
    for cb in range(4):
        for qb in range(2):
            a = SB + (cb * 2 + qb) * 16
            o = QB + (cb * 2 + qb) * 8
            for r in range(8):
                k('v_cvt_pk_bf16_f32 v%d, v%d, v%d' % (o + r, a + 2 * r, a + 2 * r + 1))
            for j in range(2):
                k('buffer_store_dwordx4 %s, v30, s[8:11], s%d offen offset:%d' % (vr(o + 4 * j, 4), 36 + qb * 2 + (cb >> 1), ((cb & 1) * 4 + 2 * j) * 512))
    pf.finish('K1')
    k.label('K1_END')
    k('s_endpgm')
    k.label('K1_FALLBACK')
    k('s_waitcnt vmcnt(0)')
    k('s_mov_b32 s%d, 1' % S_FB)
    k('v_lshrrev_b32 v27, 5, v1')
    k('v_and_b32 v28, 31, v1')
    k('v_and_b32 v29, 15, v1')
    k('v_xor_b32 v30, v27, v29')
    k('v_lshlrev_b32 v30, 4, v30')
    k('v_lshl_add_u32 v%d, v28, 8, v30' % KA)
    k('v_add_u32 v%d, %d, v%d' % (KA, LDS_K, KA))
    for t in range(1, 8):
        k('v_xor_b32 v%d, %d, v%d' % (KA + t, t << 5, KA))
    k('v_mov_b32 v%d, 0xff800000' % TT)
    k('v_mov_b32 v%d, 0xff800000' % (TT + 1))
    k('s_mov_b32 s%d, s%d' % (S_KO, S_W4K))
    k('s_mov_b32 s%d, 32' % S_CNT)
    k.label('K1_FB_LOOP')
    k('s_barrier')
    k.emit(flat(kdma(0)))
    k('s_waitcnt vmcnt(0)')
    k('s_barrier')
    for tile in range(2):
        for t in range(8):
            k('ds_read_b128 %s, v%d offset:%d' % (ar(AK + 4 * t, 4), KA + t, tile * 8 * KB))
        k('s_waitcnt lgkmcnt(0)')
        for qb in range(2):
            for t in range(8):
                d = vr(S(0, qb), 16)
                k('%s %s, %s, %s, %s' % (MF, d, ar(AK + 4 * t, 4), vr(QB + (qb * 8 + t) * 4, 4), d if t else '0'))
        for qb in range(2):
            for r in range(0, 16, 2):
                k('v_max3_f32 v%d, v%d, v%d, v%d' % (TT + qb, TT + qb, S(0, qb) + r, S(0, qb) + r + 1))
    k('s_sub_u32 s%d, s%d, 1' % (S_CNT, S_CNT))
    k('s_cmp_lg_u32 s%d, 0' % S_CNT)
    k('s_cbranch_scc1 K1_FB_LOOP')
    for qb in range(2):
        k('v_mov_b32 v%d, v%d' % (27 + qb, TT + qb))
    for qb in range(2):
        k('v_permlane32_swap_b32 v%d, v%d' % (TT + qb, 27 + qb))
    for qb in range(2):
        k('v_max_f32 v%d, v%d, v%d' % (TT + qb, TT + qb, 27 + qb))
    for i in range(128):
        k('v_accvgpr_write_b32 a%d, 0' % i)
    k('s_barrier')
    k('s_mov_b32 s%d, s%d' % (S_KO, S_W4K))
    k.emit(flat(kdma(0)))
    k('s_waitcnt vmcnt(0)')
    k('s_barrier')
    k('s_sub_u32 s%d, s%d, %d' % (S_VO, S_W4K, 8 * KB))
    k('s_mov_b32 s%d, 0' % S_WOFF)
    k.emit(flat(kdma(1)))
    k.emit(flat(vdma(0)))
    k.emit(flat(kdma(2)))
    k.emit(flat(vdma(1)))
    for t in range(8):
        k('ds_read_b128 %s, v%d offset:0' % (ar(AK + 4 * t, 4), KA + t))
    k('s_nop 15')
    k('s_branch K1_PRE')
    return k


def header():
    src = open('cdna_kernels/%s.s.ref' % NAME).read().split('\n')
    out = []
    for ln in src:
        if ln.startswith('; Override') or ln.startswith('; grid=') or ln.startswith('; @launch'):
            continue
        if not ln.startswith(';'):
            break
        out.append(ln)
    return '\n'.join(out)


def main():
    ks = [k0(), k1()]
    import tail
    ks += tail.kernels()
    s = build(ks, header(), verbose='-v' in sys.argv)
    pos = [a for a in sys.argv[1:] if not a.startswith('-')]
    out = pos[0] if pos else 'cdna_kernels/%s.s' % NAME
    open(out, 'w').write(s)
    print('wrote', out, len(s), 'bytes')


if __name__ == '__main__':
    main()
```
